```python
import torch

def _softmax(x, axis=-1):
    return torch.softmax(x, dim=axis)
def _gelu(x):
    return torch.nn.functional.gelu(x, approximate="tanh")
def _silu(x):
    return torch.nn.functional.silu(x)
def _sigmoid(x):
    return torch.sigmoid(x)
def _layernorm(x, axis=-1, eps=1e-5):
    m = x.mean(dim=axis, keepdim=True)
    v = x.var(dim=axis, keepdim=True, unbiased=False)
    return (x - m) / torch.sqrt(v + eps)
def _scatter_add(tgt, idx, src, axis=0):
    return tgt.clone().index_add_(axis, idx, src)
def _segment_sum(src, seg, n):
    out = torch.zeros((n,) + src.shape[1:], dtype=src.dtype)
    return out.index_add_(0, seg, src)
def _pad(x, pw):
    flat = tuple(v for pair in reversed(pw) for v in pair)
    return torch.nn.functional.pad(x, flat)

kernel_name = 'concat_heads__gqa_block_cached__gqa_block_cached__near_ridge'

def setup_inputs():

    _w = (lambda a: (lambda t: t.to(torch.bfloat16) if t.is_floating_point() else t)(torch.as_tensor(a)))
    def _A_setup():
        B, Sq, D = 8, 96, 448
        Hq, Hkv, Sk, Dh = 16, 8, 1024, 256
        assert Hq % Hkv == 0, (Hq, Hkv)
        return {
            "x": _w((lambda *s: torch.randn(*s, dtype=torch.bfloat16) * 0.8)(B, Sq, D)),
            "k_cache": _w((lambda *s: torch.randn(*s, dtype=torch.bfloat16) * 0.8)(B, Hkv, Sk, Dh)),
            "v_cache": _w((lambda *s: torch.randn(*s, dtype=torch.bfloat16) * 0.05)(B, Hkv, Sk, Dh)),
            "wq": _w((lambda *s: torch.randn(*s, dtype=torch.bfloat16) * 0.8)(D, Hq * Dh) * (D ** -0.5)),
            "wo": _w((lambda *s: torch.randn(*s, dtype=torch.bfloat16) * 0.05)(Hq * Dh, D) * ((Hq * Dh) ** -0.5)),
        }
    _A_in = _A_setup()

    def _B_setup():
        B, Sq, D = 8, 96, 448
        Hq, Hkv, Sk, Dh = 16, 8, 1024, 256
        assert Hq % Hkv == 0, (Hq, Hkv)
        return {
            "x": _w((lambda *s: torch.randn(*s, dtype=torch.bfloat16) * 0.8)(B, Sq, D)),
            "k_cache": _w((lambda *s: torch.randn(*s, dtype=torch.bfloat16) * 0.8)(B, Hkv, Sk, Dh)),
            "v_cache": _w((lambda *s: torch.randn(*s, dtype=torch.bfloat16) * 0.05)(B, Hkv, Sk, Dh)),
            "wq": _w((lambda *s: torch.randn(*s, dtype=torch.bfloat16) * 0.8)(D, Hq * Dh) * (D ** -0.5)),
            "wo": _w((lambda *s: torch.randn(*s, dtype=torch.bfloat16) * 0.05)(Hq * Dh, D) * ((Hq * Dh) ** -0.5)),
        }
    _B_in = _B_setup()

    return {
        "A_x": _A_in["x"],
        "A_k_cache": _A_in["k_cache"],
        "A_v_cache": _A_in["v_cache"],
        "A_wq": _A_in["wq"],
        "A_wo": _A_in["wo"],
        "B_x": _B_in["x"],
        "B_k_cache": _B_in["k_cache"],
        "B_v_cache": _B_in["v_cache"],
        "B_wq": _B_in["wq"],
        "B_wo": _B_in["wo"],
    }

def reference(A_x, A_k_cache, A_v_cache, A_wq, A_wo, B_x, B_k_cache, B_v_cache, B_wq, B_wo):
    def _A_ref(x, k_cache, v_cache, wq, wo):
        B, Sq, D = x.shape
        Hq, Dh = 16, 256
        Hkv = k_cache.shape[1]
        rep = Hq // Hkv
        q = (lambda x, *d: x.permute(*d))((x @ wq).reshape(B, Sq, Hq, Dh), 0, 2, 1, 3)
        k = (lambda x, n, axis: torch.repeat_interleave(x, n, dim=axis))(k_cache, rep, axis=1)
        v = (lambda x, n, axis: torch.repeat_interleave(x, n, dim=axis))(v_cache, rep, axis=1)
        scores = torch.einsum("bhqd,bhkd->bhqk", q, k) * (Dh ** -0.5)
        p = _softmax(scores, axis=-1)
        o = torch.einsum("bhqk,bhkd->bhqd", p, v)
        return (lambda x, *d: x.permute(*d))(o, 0, 2, 1, 3).reshape(B, Sq, Hq * Dh) @ wo

    def _B_ref(x, k_cache, v_cache, wq, wo):
        B, Sq, D = x.shape
        Hq, Dh = 16, 256
        Hkv = k_cache.shape[1]
        rep = Hq // Hkv
        q = (lambda x, *d: x.permute(*d))((x @ wq).reshape(B, Sq, Hq, Dh), 0, 2, 1, 3)
        k = (lambda x, n, axis: torch.repeat_interleave(x, n, dim=axis))(k_cache, rep, axis=1)
        v = (lambda x, n, axis: torch.repeat_interleave(x, n, dim=axis))(v_cache, rep, axis=1)
        scores = torch.einsum("bhqd,bhkd->bhqk", q, k) * (Dh ** -0.5)
        p = _softmax(scores, axis=-1)
        o = torch.einsum("bhqk,bhkd->bhqd", p, v)
        return (lambda x, *d: x.permute(*d))(o, 0, 2, 1, 3).reshape(B, Sq, Hq * Dh) @ wo

    a = _A_ref(A_x, A_k_cache, A_v_cache, A_wq, A_wo)
    b = _B_ref(B_x, B_k_cache, B_v_cache, B_wq, B_wo)
    return torch.concatenate([a, b], axis=-1)
```

```python
import sys, math

class G:
    def __init__(self):
        self.lines = []
    def e(self, s):
        self.lines.append("    " + s)
    def l(self, s):
        self.lines.append(s + ":")
    def c(self, s):
        self.lines.append("    ; " + s)

DEBUG = sys.argv[2] if len(sys.argv) > 2 else "full"

CSCALE = math.log2(math.e) / 16.0
def f32hex(x):
    import struct
    return "0x%08x" % struct.unpack("<I", struct.pack("<f", x))[0]

KRING = 0
VRING = 65536
QBUF = 98304
XBUF = 0
WRING = 90112
LDS_BYTES = 163840

def gen_attn(g):
    e = g.e
    g.l("attn_kernel")
    e("s_cmp_ge_u32 s2, 256")
    e("s_cbranch_scc1 L_attn_end")
    g.c("decode workgroup id -> (blk, b, j, h)")
    e("s_lshr_b32 s24, s2, 3")
    e("s_and_b32 s25, s24, 1")
    e("s_lshr_b32 s26, s2, 4")
    e("s_lshl_b32 s26, s26, 3")
    e("s_and_b32 s27, s2, 7")
    e("s_or_b32 s26, s26, s27")
    e("s_lshr_b32 s27, s26, 6")
    e("s_bfe_u32 s28, s26, 0x30003")
    e("s_and_b32 s29, s26, 7")
    e("s_lshl_b32 s30, s29, 1")
    e("s_or_b32 s30, s30, s25")
    e("s_mul_i32 s31, s27, 40")
    e("s_add_u32 s32, s0, s31")
    e("s_addc_u32 s33, s1, 0")
    e("s_load_dwordx2 s[4:5], s[32:33], 0")
    e("s_load_dwordx2 s[12:13], s[32:33], 8")
    e("s_load_dwordx2 s[16:17], s[32:33], 16")
    e("s_load_dwordx2 s[8:9], s[32:33], 24")
    e("s_load_dwordx2 s[20:21], s[0:1], 96")
    e("v_lshrrev_b32 v1, 6, v0")
    e("s_nop 0")
    e("v_readfirstlane_b32 s34, v1")
    e("s_waitcnt lgkmcnt(0)")
    g.c("SRDs")
    e("s_mul_i32 s35, s28, 86016")
    e("s_add_u32 s4, s4, s35")
    e("s_addc_u32 s5, s5, 0")
    e("s_and_b32 s5, s5, 0xffff")
    e("s_mov_b32 s6, 86016")
    e("s_mov_b32 s7, 0x00020000")
    e("s_lshl_b32 s35, s30, 9")
    e("s_add_u32 s8, s8, s35")
    e("s_addc_u32 s9, s9, 0")
    e("s_and_b32 s9, s9, 0xffff")
    e("s_sub_u32 s10, 3670016, s35")
    e("s_mov_b32 s11, 0x00020000")
    e("s_lshl_b32 s36, s28, 3")
    e("s_add_u32 s36, s36, s29")
    e("s_lshl_b32 s36, s36, 19")
    e("s_add_u32 s12, s12, s36")
    e("s_addc_u32 s13, s13, 0")
    e("s_and_b32 s13, s13, 0xffff")
    e("s_mov_b32 s14, 524288")
    e("s_mov_b32 s15, 0x00020000")
    e("s_add_u32 s16, s16, s36")
    e("s_addc_u32 s17, s17, 0")
    e("s_and_b32 s17, s17, 0xffff")
    e("s_mov_b32 s18, 524288")
    e("s_mov_b32 s19, 0x00020000")
    e("s_mul_i32 s36, s27, 6291456")
    e("s_mul_i32 s37, s28, 786432")
    e("s_add_u32 s36, s36, s37")
    e("s_add_u32 s36, s36, s35")
    e("s_add_u32 s20, s20, s36")
    e("s_addc_u32 s21, s21, 0")
    e("s_and_b32 s21, s21, 0xffff")
    e("s_mov_b32 s22, 786432")
    e("s_mov_b32 s23, 0x00020000")
    e("s_lshr_b32 s38, s34, 1")
    e("s_and_b32 s39, s34, 1")
    g.c("lane decomposition")
    e("v_and_b32 v1, 63, v0")
    e("v_and_b32 v2, 15, v1")
    e("v_lshrrev_b32 v3, 4, v1")
    e("v_lshrrev_b32 v30, 5, v1")
    e("v_and_b32 v31, 31, v1")
    g.c("DMA voffsets for K/V tiles: v4..v7")
    for ii in range(4):
        e(f"v_add_u32 v32, {2*ii}, v30")
        e("v_and_b32 v32, 7, v32")
        e("v_lshlrev_b32 v32, 1, v32")
        e("v_xor_b32 v32, v31, v32")
        e("v_lshlrev_b32 v32, 4, v32")
        e(f"v_lshl_add_u32 v{4+ii}, v30, 9, v32")
    g.c("DMA voffsets for wq chunks: v8..v11 ; row = 2*(4w+ii)+hi ; f = (row&3)|((row>>1)&4)")
    e("s_lshl_b32 s40, s34, 3")
    for ii in range(4):
        e(f"v_add_u32 v32, {2*ii}, v30")
        e("v_add_u32 v32, s40, v32")
        e("v_and_b32 v33, 3, v32")
        e("v_lshrrev_b32 v34, 1, v32")
        e("v_and_b32 v34, 4, v34")
        e("v_or_b32 v33, v33, v34")
        e("v_lshlrev_b32 v33, 1, v33")
        e("v_xor_b32 v33, v31, v33")
        e("v_lshlrev_b32 v33, 4, v33")
        e(f"v_lshl_add_u32 v{8+ii}, v30, 13, v33")
    g.c("DMA voffset for x: q*896 + 16*g")
    e("v_mul_u32_u24 v12, 896, v2")
    e("v_lshl_add_u32 v12, v3, 4, v12")
    g.c("K A-frag addresses v13..v16")
    e("s_lshl_b32 s40, s39, 5")
    e("v_add_u32 v32, s40, v2")
    e("v_lshlrev_b32 v32, 9, v32")
    e("v_and_b32 v33, 7, v2")
    e("v_lshlrev_b32 v33, 1, v33")
    for s in range(4):
        e(f"v_add_u32 v34, {4*s}, v3")
        e("v_xor_b32 v34, v34, v33")
        e(f"v_lshl_add_u32 v{13+s}, v34, 4, v32")
    g.c("V tr-read addresses v17..v24 ; row = 32kh + 4g + (i>>2)")
    e("v_lshrrev_b32 v33, 2, v2")
    e("v_lshl_add_u32 v33, v3, 2, v33")
    e("v_and_b32 v34, 7, v33")
    e("v_add_u32 v33, s40, v33")
    e("v_lshlrev_b32 v33, 9, v33")
    e(f"v_add_u32 v33, {VRING}, v33")
    e("v_and_b32 v35, 3, v2")
    e("v_lshlrev_b32 v35, 3, v35")
    e("v_add_u32 v33, v33, v35")
    for dt in range(8):
        e(f"v_xor_b32 v36, {dt}, v34")
        e(f"v_lshl_add_u32 v{17+dt}, v36, 5, v33")
    g.c("wq tr-read addresses v25..v28 ; row = 8g + (i>>2) ; f = (i>>2) | ((g&1)<<2)")
    e("v_lshrrev_b32 v33, 2, v2")
    e("v_and_b32 v34, 1, v3")
    e("v_lshl_or_b32 v34, v34, 2, v33")
    e("v_lshl_add_u32 v33, v3, 3, v33")
    e("v_lshlrev_b32 v33, 9, v33")
    e(f"v_add_u32 v33, {WRING}, v33")
    e("v_add_u32 v33, v33, v35")
    e("s_lshl_b32 s40, s34, 2")
    for k in range(4):
        e(f"s_add_u32 s41, s40, {k}")
        e("s_and_b32 s42, s41, 7")
        e("v_xor_b32 v36, s42, v34")
        e(f"v_lshl_add_u32 v{25+k}, v36, 5, v33")
        e("s_lshr_b32 s42, s41, 3")
        e("s_lshl_b32 s42, s42, 8")
        e(f"v_add_u32 v{25+k}, s42, v{25+k}")
    e("v_lshlrev_b32 v29, 4, v1")
    e("v_add_u32 v37, 0x10000, v29")

    g.c("==== Q projection ====")
    g.c("stage x into LDS: 84 blocks of 1KB; wave w takes blocks w, w+4, ...")
    for n in range(21):
        e(f"s_add_u32 s40, s34, {4*n}")
        e("s_mul_i32 s41, s40, 171")
        e("s_lshr_b32 s41, s41, 10")
        e("s_mul_i32 s42, s41, 6")
        e("s_sub_u32 s42, s40, s42")
        e("s_mul_i32 s42, s42, 14336")
        e("s_lshl_b32 s41, s41, 6")
        e("s_add_u32 s42, s42, s41")
        e("s_lshl_b32 s43, s40, 10")
        e("s_mov_b32 m0, s43")
        e("s_nop 0")
        e("buffer_load_dwordx4 v12, s[4:7], s42 offen lds")
    def wq_dma(cs):
        slot = cs % 3
        e(f"s_lshl_b32 s40, s34, 12")
        e(f"s_add_u32 s40, s40, {WRING + slot*16384}")
        e("s_mov_b32 m0, s40")
        e(f"s_lshl_b32 s41, s34, 16")
        e(f"s_add_u32 s41, s41, {cs*32*8192}")
        for ii in range(4):
            if ii:
                e(f"s_add_u32 s40, s40, 1024")
                e("s_mov_b32 m0, s40")
                e(f"s_add_u32 s41, s41, 16384")
            e("s_nop 0")
            e(f"buffer_load_dwordx4 v{8+ii}, s[8:11], s41 offen lds")
    wq_dma(0)
    wq_dma(1)
    QACC = 64
    for t in range(96):
        e(f"v_mov_b32 v{QACC+t}, 0")
    AF, BF = 160, 176
    for cs in range(14):
        slot = cs % 3
        if cs < 13:
            e("s_waitcnt vmcnt(4)")
        else:
            e("s_waitcnt vmcnt(0)")
        e("s_barrier")
        if cs + 2 < 14:
            wq_dma(cs + 2)
        for k in range(4):
            e(f"ds_read_b64_tr_b16 v[{AF+4*k}:{AF+4*k+1}], v{25+k} offset:{slot*16384}")
            e(f"ds_read_b64_tr_b16 v[{AF+4*k+2}:{AF+4*k+3}], v{25+k} offset:{slot*16384+2048}")
        for qt in range(6):
            off = XBUF + (cs*6+qt)*1024
            if off >= 65536:
                e(f"ds_read_b128 v[{BF+4*qt}:{BF+4*qt+3}], v37 offset:{off-65536}")
            else:
                e(f"ds_read_b128 v[{BF+4*qt}:{BF+4*qt+3}], v29 offset:{off}")
        e("s_waitcnt lgkmcnt(0)")
        for k in range(4):
            for qt in range(6):
                a = QACC + (k*6+qt)*4
                e(f"v_mfma_f32_16x16x32_bf16 v[{a}:{a+3}], v[{AF+4*k}:{AF+4*k+3}], v[{BF+4*qt}:{BF+4*qt+3}], v[{a}:{a+3}]")
    e("s_nop 7")
    e("s_nop 7")
    e("s_barrier")
    g.c("prefetch K(0), V(0), K(1)")
    def kv_dma(which, t, slot):
        srd = "s[12:15]" if which == 'K' else "s[16:19]"
        base = (KRING if which == 'K' else VRING) + slot*32768
        e(f"s_lshl_b32 s40, s34, 13")
        if isinstance(t, int):
            e(f"s_add_u32 s41, s40, {t*32768}")
        else:
            e(f"s_add_u32 s41, s40, {t}")
        e(f"s_add_u32 s40, s40, {base}")
        for half in range(2):
            if half:
                e("s_add_u32 s40, s40, 4096")
                e("s_add_u32 s41, s41, 4096")
            e("s_mov_b32 m0, s40")
            e("s_nop 0")
            for ii in range(4):
                e(f"buffer_load_dwordx4 v{4+ii}, {srd}, s41 offen offset:{ii*1024} lds")
    kv_dma('K', 0, 0)
    kv_dma('V', 0, 0)
    kv_dma('K', 1, 1)
    g.c("write Q^T tiles (bf16) to LDS Q buffer: q*528 + d*2")
    e("v_mul_u32_u24 v32, 528, v2")
    e("v_lshl_add_u32 v32, v3, 3, v32")
    e("s_lshl_b32 s40, s34, 7")
    e(f"s_add_u32 s40, s40, {QBUF}")
    e("v_add_u32 v32, s40, v32")
    for k in range(4):
        for qt in range(6):
            a = QACC + (k*6+qt)*4
            e(f"v_cvt_pk_bf16_f32 v{AF}, v{a}, v{a+1}")
            e(f"v_cvt_pk_bf16_f32 v{AF+1}, v{a+2}, v{a+3}")
            e(f"ds_write_b64 v32, v[{AF}:{AF+1}] offset:{qt*16*528 + k*32}")
    e("s_waitcnt lgkmcnt(0)")
    e("s_barrier")
    if DEBUG == "q":
        g.c("DEBUG: dump Q from LDS to ws (each wave dumps 24 rows)")
        for it in range(12):
            e(f"v_add_u32 v32, {it*256}, v0")
            e("v_lshrrev_b32 v33, 5, v32")
            e("v_and_b32 v34, 31, v32")
            e("v_mul_u32_u24 v35, 528, v33")
            e("v_lshl_add_u32 v35, v34, 4, v35")
            e(f"v_add_u32 v35, {QBUF}, v35")
            e(f"ds_read_b128 v[40:43], v35")
            e("v_lshlrev_b32 v36, 13, v33")
            e("v_lshl_add_u32 v36, v34, 4, v36")
            e("s_waitcnt lgkmcnt(0)")
            e("buffer_store_dwordx4 v[40:43], v36, s[20:23], 0 offen")
        e("s_waitcnt vmcnt(0)")
        e("s_branch L_attn_end")
    g.c("read Q B-frags: q = 48r + 16qt + q16 ; 16B at q*528 + (32s+8g)*2")
    QF = 64
    e("s_mul_i32 s40, s38, 48")
    e("v_add_u32 v32, s40, v2")
    e("v_mul_u32_u24 v32, 528, v32")
    e("v_lshl_add_u32 v32, v3, 4, v32")
    e(f"v_add_u32 v32, {QBUF}, v32")
    for s in range(8):
        for qt in range(3):
            f = QF + (s*3+qt)*4
            e(f"ds_read_b128 v[{f}:{f+3}], v32 offset:{qt*16*528 + s*64}")
    e("s_waitcnt lgkmcnt(0)")
    e("s_barrier")
    kv_dma('V', 1, 1)

    g.c("==== attention main loop ====")
    SACC = 160
    PF = 184
    KF = 196
    MREF, THR, MC, LSUM, MX = 232, 235, 238, 241, 244
    T0 = 248
    for qt in range(3):
        e(f"v_mov_b32 v{MREF+qt}, 0xff800000")
        e(f"v_mov_b32 v{THR+qt}, 0xff800000")
        e(f"v_mov_b32 v{MC+qt}, 0")
        e(f"v_mov_b32 v{LSUM+qt}, 0")
    for t in range(192):
        e(f"v_accvgpr_write_b32 a{t}, 0")
    e("s_mov_b32 s44, 0")
    e(f"s_mov_b32 s45, {2*32768}")
    e(f"s_mov_b32 s46, {f32hex(CSCALE)}")
    e("s_waitcnt vmcnt(24)")
    e("s_barrier")
    g.l("L_loop")
    for slot in range(2):
        g.c(f"---- iteration slot {slot}")
        g.c("QK^T")
        def kread(s, kt, dst):
            e(f"ds_read_b128 v[{dst}:{dst+3}], v{13+(s&3)} offset:{KRING + slot*32768 + kt*8192 + (s>>2)*256}")
        for kt in range(2):
            kread(0, kt, KF + kt*4)
        for s in range(8):
            cur = KF + (s & 1)*8
            nxt = KF + ((s+1) & 1)*8
            if s < 7:
                for kt in range(2):
                    kread(s+1, kt, nxt + kt*4)
                e("s_waitcnt lgkmcnt(2)")
            else:
                e("s_waitcnt lgkmcnt(0)")
            for kt in range(2):
                for qt in range(3):
                    a = SACC + (kt*3+qt)*4
                    q = QF + (s*3+qt)*4
                    src = "0" if s == 0 else f"v[{a}:{a+3}]"
                    e(f"v_mfma_f32_16x16x32_bf16 v[{a}:{a+3}], v[{cur+kt*4}:{cur+kt*4+3}], v[{q}:{q+3}], {src}")
        e("s_waitcnt vmcnt(16)")
        e("s_barrier")
        kv_dma('K', "s45", slot)
        e("s_nop 4")
        g.c("softmax: row max")
        for qt in range(3):
            a0 = SACC + qt*4
            a1 = SACC + (3+qt)*4
            e(f"v_max3_f32 v{MX+qt}, v{a0}, v{a0+1}, v{a0+2}")
            e(f"v_max3_f32 v{MX+qt}, v{MX+qt}, v{a0+3}, v{a1}")
            e(f"v_max3_f32 v{MX+qt}, v{MX+qt}, v{a1+1}, v{a1+2}")
            e(f"v_max_f32 v{MX+qt}, v{MX+qt}, v{a1+3}")
        for qt in range(3):
            e(f"v_mov_b32 v{T0}, v{MX+qt}")
            e("s_nop 1")
            e(f"v_permlane16_swap_b32 v{MX+qt}, v{T0}")
            e(f"v_max_f32 v{MX+qt}, v{MX+qt}, v{T0}")
            e(f"v_mov_b32 v{T0}, v{MX+qt}")
            e("s_nop 1")
            e(f"v_permlane32_swap_b32 v{MX+qt}, v{T0}")
            e(f"v_max_f32 v{MX+qt}, v{MX+qt}, v{T0}")
        e(f"v_cmp_gt_f32 s[48:49], v{MX}, v{THR}")
        e(f"v_cmp_gt_f32 s[50:51], v{MX+1}, v{THR+1}")
        e(f"v_cmp_gt_f32 s[52:53], v{MX+2}, v{THR+2}")
        e("s_or_b64 s[48:49], s[48:49], s[50:51]")
        e("s_or_b64 s[48:49], s[48:49], s[52:53]")
        e(f"s_cbranch_scc0 L_norescale{slot}")
        g.c("rescale path (rare)")
        for qt in range(3):
            e(f"v_max_f32 v{T0}, v{MREF+qt}, v{MX+qt}")
            e(f"v_sub_f32 v{T0+1}, v{MREF+qt}, v{T0}")
            e(f"v_mul_f32 v{T0+1}, s46, v{T0+1}")
            e(f"v_exp_f32 v{T0+1}, v{T0+1}")
            e(f"v_mov_b32 v{MREF+qt}, v{T0}")
            e(f"v_add_f32 v{THR+qt}, {f32hex(8.0/CSCALE)}, v{T0}")
            e(f"v_mul_f32 v{MC+qt}, s46, v{T0}")
            e(f"v_mul_f32 v{LSUM+qt}, v{LSUM+qt}, v{T0+1}")
            for dt in range(16):
                for i in range(4):
                    a = (dt*3+qt)*4 + i
                    e(f"v_accvgpr_read_b32 v{T0+2}, a{a}")
                    e(f"v_mul_f32 v{T0+2}, v{T0+2}, v{T0+1}")
                    e(f"v_accvgpr_write_b32 a{a}, v{T0+2}")
        g.l(f"L_norescale{slot}")
        g.c("p = exp2(s*c - m*c)")
        for qt in range(3):
            for kt in range(2):
                a = SACC + (kt*3+qt)*4
                for i in range(4):
                    e(f"v_fma_f32 v{a+i}, v{a+i}, s46, -v{MC+qt}")
                    e(f"v_exp_f32 v{a+i}, v{a+i}")
            a0 = SACC + qt*4
            a1 = SACC + (3+qt)*4
            e(f"v_add_f32 v{T0}, v{a0}, v{a0+1}")
            e(f"v_add_f32 v{T0+1}, v{a0+2}, v{a0+3}")
            e(f"v_add_f32 v{T0+2}, v{a1}, v{a1+1}")
            e(f"v_add_f32 v{T0+3}, v{a1+2}, v{a1+3}")
            e(f"v_add_f32 v{T0}, v{T0}, v{T0+1}")
            e(f"v_add_f32 v{T0+2}, v{T0+2}, v{T0+3}")
            e(f"v_add_f32 v{LSUM+qt}, v{LSUM+qt}, v{T0}")
            e(f"v_add_f32 v{LSUM+qt}, v{LSUM+qt}, v{T0+2}")
            p = PF + qt*4
            e(f"v_cvt_pk_bf16_f32 v{p}, v{a0}, v{a0+1}")
            e(f"v_cvt_pk_bf16_f32 v{p+1}, v{a0+2}, v{a0+3}")
            e(f"v_cvt_pk_bf16_f32 v{p+2}, v{a1}, v{a1+1}")
            e(f"v_cvt_pk_bf16_f32 v{p+3}, v{a1+2}, v{a1+3}")
        g.c("PV")
        def vread(dt, dst):
            off = slot*32768 + (dt >> 3)*256
            e(f"ds_read_b64_tr_b16 v[{dst}:{dst+1}], v{17+(dt&7)} offset:{off}")
            e(f"ds_read_b64_tr_b16 v[{dst+2}:{dst+3}], v{17+(dt&7)} offset:{off+8192}")
        vread(0, KF)
        vread(1, KF+4)
        for dt in range(16):
            cur = KF + (dt & 3)*4
            if dt + 2 < 16:
                vread(dt+2, KF + ((dt+2) & 3)*4)
                e("s_waitcnt lgkmcnt(4)")
            elif dt + 1 < 16:
                e("s_waitcnt lgkmcnt(2)")
            else:
                e("s_waitcnt lgkmcnt(0)")
            for qt in range(3):
                a = (dt*3+qt)*4
                p = PF + qt*4
                e(f"v_mfma_f32_16x16x32_bf16 a[{a}:{a+3}], v[{cur}:{cur+3}], v[{p}:{p+3}], a[{a}:{a+3}]")
        e("s_waitcnt vmcnt(16)")
        e("s_barrier")
        kv_dma('V', "s45", slot)
        e("s_add_u32 s45, s45, 32768")
    e("s_add_u32 s44, s44, 1")
    e("s_cmp_lt_u32 s44, 8")
    e("s_cbranch_scc1 L_loop")

    g.c("==== epilogue ====")
    e("s_waitcnt vmcnt(0)")
    e("s_barrier")
    e("s_lshl_b32 s40, s38, 16")
    e("v_add_u32 v32, s40, v29")
    e("s_cmp_eq_u32 s39, 0")
    e("s_cbranch_scc1 L_ep_recv")
    for t in range(48):
        e(f"ds_write_b128 v32, a[{4*t}:{4*t+3}] offset:{t*1024}")
    for qt in range(3):
        e(f"v_mov_b32 v{T0}, v{MREF+qt}")
        e(f"v_mov_b32 v{T0+1}, v{LSUM+qt}")
        e(f"ds_write_b64 v32, v[{T0}:{T0+1}] offset:{49152 + qt*1024}")
    e("s_waitcnt lgkmcnt(0)")
    e("s_barrier")
    e("s_branch L_attn_end")
    g.l("L_ep_recv")
    e("s_barrier")
    F0, F1, INV = 226, 229, 223
    for qt in range(3):
        e(f"ds_read_b64 v[{T0}:{T0+1}], v32 offset:{49152 + qt*1024}")
        e("s_waitcnt lgkmcnt(0)")
        e(f"v_max_f32 v{T0+2}, v{MREF+qt}, v{T0}")
        e(f"v_sub_f32 v{T0+3}, v{MREF+qt}, v{T0+2}")
        e(f"v_mul_f32 v{T0+3}, s46, v{T0+3}")
        e(f"v_exp_f32 v{F0+qt}, v{T0+3}")
        e(f"v_sub_f32 v{T0+3}, v{T0}, v{T0+2}")
        e(f"v_mul_f32 v{T0+3}, s46, v{T0+3}")
        e(f"v_exp_f32 v{F1+qt}, v{T0+3}")
        e("s_nop 0")
        e(f"v_mul_f32 v{T0+4}, v{LSUM+qt}, v{F0+qt}")
        e(f"v_fma_f32 v{T0+4}, v{T0+1}, v{F1+qt}, v{T0+4}")
        e(f"v_mov_b32 v{T0+5}, v{T0+4}")
        e("s_nop 1")
        e(f"v_permlane16_swap_b32 v{T0+4}, v{T0+5}")
        e(f"v_add_f32 v{T0+4}, v{T0+4}, v{T0+5}")
        e(f"v_mov_b32 v{T0+5}, v{T0+4}")
        e("s_nop 1")
        e(f"v_permlane32_swap_b32 v{T0+4}, v{T0+5}")
        e(f"v_add_f32 v{T0+4}, v{T0+4}, v{T0+5}")
        e(f"v_rcp_f32 v{INV+qt}, v{T0+4}")
        e("s_nop 0")
        e(f"v_mul_f32 v{F0+qt}, v{F0+qt}, v{INV+qt}")
        e(f"v_mul_f32 v{F1+qt}, v{F1+qt}, v{INV+qt}")
    g.c("store address: (48r + 16qt + q16)*8192 + (16dt+4g)*2")
    e("s_mul_i32 s40, s38, 48")
    e("v_add_u32 v33, s40, v2")
    e("v_lshlrev_b32 v33, 13, v33")
    e("v_lshl_add_u32 v33, v3, 3, v33")
    for dt in range(16):
        for qt in range(3):
            t = dt*3+qt
            e(f"ds_read_b128 v[40:43], v32 offset:{t*1024}")
            for i in range(4):
                e(f"v_accvgpr_read_b32 v{44+i}, a{4*t+i}")
            e("s_waitcnt lgkmcnt(0)")
            for i in range(4):
                e(f"v_mul_f32 v{44+i}, v{44+i}, v{F0+qt}")
                e(f"v_fma_f32 v{44+i}, v{40+i}, v{F1+qt}, v{44+i}")
            e("v_cvt_pk_bf16_f32 v48, v44, v45")
            e("v_cvt_pk_bf16_f32 v49, v46, v47")
            e(f"buffer_store_dwordx2 v[48:49], v33, s[20:23], 0 offen offset:{dt*32}") if qt == 0 else None
            if qt:
                e(f"v_add_u32 v34, {qt*16*8192}, v33")
                e(f"buffer_store_dwordx2 v[48:49], v34, s[20:23], 0 offen offset:{dt*32}")
    e("s_waitcnt vmcnt(0)")
    g.l("L_attn_end")
    e("s_endpgm")


def gen_oproj(g):
    e = g.e
    g.l("oproj_kernel")
    e("s_cmp_ge_u32 s2, 224")
    e("s_cbranch_scc1 L_op_end")
    e("s_mul_i32 s24, s2, 9363")
    e("s_lshr_b32 s24, s24, 20")
    e("s_mul_i32 s25, s24, 112")
    e("s_sub_u32 s25, s2, s25")
    e("s_mul_i32 s26, s25, 9363")
    e("s_lshr_b32 s26, s26, 16")
    e("s_mul_i32 s27, s26, 7")
    e("s_sub_u32 s27, s25, s27")
    e("s_mul_i32 s31, s24, 40")
    e("s_add_u32 s32, s0, s31")
    e("s_addc_u32 s33, s1, 0")
    e("s_load_dwordx2 s[4:5], s[32:33], 32")
    e("s_load_dwordx2 s[8:9], s[0:1], 96")
    e("s_load_dwordx2 s[12:13], s[0:1], 80")
    e("v_lshrrev_b32 v1, 6, v0")
    e("s_nop 0")
    e("v_readfirstlane_b32 s34, v1")
    e("s_waitcnt lgkmcnt(0)")
    e("s_lshl_b32 s35, s27, 7")
    e("s_add_u32 s4, s4, s35")
    e("s_addc_u32 s5, s5, 0")
    e("s_and_b32 s5, s5, 0xffff")
    e("s_sub_u32 s6, 3670016, s35")
    e("s_mov_b32 s7, 0x00020000")
    e("s_mul_i32 s36, s24, 6291456")
    e("s_mul_i32 s37, s26, 393216")
    e("s_add_u32 s36, s36, s37")
    e("s_add_u32 s8, s8, s36")
    e("s_addc_u32 s9, s9, 0")
    e("s_and_b32 s9, s9, 0xffff")
    e("s_mov_b32 s10, 393216")
    e("s_mov_b32 s11, 0x00020000")
    e("s_mul_i32 s36, s26, 86016")
    e("s_mul_i32 s37, s24, 896")
    e("s_add_u32 s36, s36, s37")
    e("s_add_u32 s36, s36, s35")
    e("s_add_u32 s12, s12, s36")
    e("s_addc_u32 s13, s13, 0")
    e("s_and_b32 s13, s13, 0xffff")
    e("s_sub_u32 s14, 1376256, s36")
    e("s_mov_b32 s15, 0x00020000")
    e("v_and_b32 v1, 63, v0")
    e("v_and_b32 v2, 15, v1")
    e("v_lshrrev_b32 v3, 4, v1")
    g.c("DMA voffset: row = L>>3 (within 8-row group), unit32 swizzle")
    e("v_lshrrev_b32 v30, 3, v1")
    e("v_and_b32 v31, 7, v1")
    for ii in range(4):
        e("v_lshrrev_b32 v32, 1, v30")
        e("v_and_b32 v32, 1, v32")
        if ii & 1:
            e("v_or_b32 v32, 2, v32")
        e("v_lshlrev_b32 v32, 1, v32")
        e("v_xor_b32 v32, v31, v32")
        e("v_lshlrev_b32 v32, 4, v32")
        e("v_mul_u32_u24 v33, 896, v30")
        e(f"v_add_u32 v{4+ii}, v32, v33")
    g.c("tr-read addresses: row = 8g + (i>>2) ; f(row) ; 4 n-tiles -> v8..v11")
    e("v_lshrrev_b32 v33, 2, v2")
    e("v_lshl_add_u32 v34, v3, 3, v33")
    e("v_lshrrev_b32 v35, 1, v33")
    e("v_and_b32 v35, 1, v35")
    e("v_and_b32 v36, 1, v3")
    e("v_lshl_or_b32 v35, v36, 1, v35")
    e("v_lshlrev_b32 v34, 7, v34")
    e("s_mul_i32 s40, s34, 12288")
    e("v_add_u32 v34, s40, v34")
    e("v_and_b32 v36, 3, v2")
    e("v_lshl_add_u32 v34, v36, 3, v34")
    for nt in range(4):
        e(f"v_xor_b32 v36, {nt}, v35")
        e(f"v_lshl_add_u32 v{8+nt}, v36, 5, v34")
    g.c("B-frag global offsets: (16mt3 + m16)*8192 + w*2048 + 16g")
    e("v_lshlrev_b32 v12, 13, v2")
    e("v_lshl_add_u32 v12, v3, 4, v12")
    e("s_lshl_b32 s41, s34, 11")
    e("v_add_u32 v12, s41, v12")
    g.c("DMA soffset base: (w*1024 rows)*896")
    e("s_mul_i32 s42, s34, 917504")
    ACC = 64
    for t in range(48):
        e(f"v_mov_b32 v{ACC+t}, 0")
    AF = 112
    BFR = 144
    def dma(ks):
        slot = ks % 3
        e(f"s_add_u32 s43, s40, {slot*4096}")
        e(f"s_add_u32 s44, s42, {ks*32*896}")
        for ii in range(4):
            if ii:
                e("s_add_u32 s43, s43, 1024")
                e("s_add_u32 s44, s44, 7168")
            e("s_mov_b32 m0, s43")
            e("s_nop 0")
            e(f"buffer_load_dwordx4 v{4+ii}, s[4:7], s44 offen lds")
    def bload(ks):
        st = BFR + (ks & 1)*12
        for mt in range(3):
            e(f"buffer_load_dwordx4 v[{st+4*mt}:{st+4*mt+3}], v12, s[8:11], 0 offen offset:{ks*64}" if mt == 0 else
              f"buffer_load_dwordx4 v[{st+4*mt}:{st+4*mt+3}], v13, s[8:11], 0 offen offset:{ks*64}" if mt == 1 else
              f"buffer_load_dwordx4 v[{st+4*mt}:{st+4*mt+3}], v14, s[8:11], 0 offen offset:{ks*64}")
    e(f"v_add_u32 v13, {16*8192}, v12")
    e(f"v_add_u32 v14, {32*8192}, v12")
    dma(0); bload(0)
    dma(1); bload(1)
    for ks in range(32):
        if ks + 2 < 32:
            dma(ks+2)
            e("s_waitcnt vmcnt(11)")
        elif ks + 1 < 32:
            e("s_waitcnt vmcnt(7)")
        else:
            e("s_waitcnt vmcnt(0)")
        slot = ks % 3
        for nt in range(4):
            e(f"ds_read_b64_tr_b16 v[{AF+4*nt}:{AF+4*nt+1}], v{8+nt} offset:{slot*4096}")
            e(f"ds_read_b64_tr_b16 v[{AF+4*nt+2}:{AF+4*nt+3}], v{8+nt} offset:{slot*4096+512}")
        e("s_waitcnt lgkmcnt(0)")
        st = BFR + (ks & 1)*12
        for nt in range(4):
            for mt in range(3):
                a = ACC + (nt*3+mt)*4
                e(f"v_mfma_f32_16x16x32_bf16 v[{a}:{a+3}], v[{AF+4*nt}:{AF+4*nt+3}], v[{st+4*mt}:{st+4*mt+3}], v[{a}:{a+3}]")
        if ks + 2 < 32:
            bload(ks+2)
    e("s_nop 7")
    e("s_nop 7")
    g.c("cross-wave reduction via LDS: region 49152.. each wave writes 12 tiles x 1KB")
    e("s_barrier")
    e("v_lshlrev_b32 v29, 4, v1")
    e("s_mul_i32 s43, s34, 12288")
    e("v_add_u32 v32, s43, v29")
    for t in range(12):
        e(f"ds_write_b128 v32, v[{ACC+4*t}:{ACC+4*t+3}] offset:{t*1024}")
    e("s_waitcnt lgkmcnt(0)")
    e("s_barrier")
    g.c("wave w reduces tiles 3w..3w+2")
    e("s_mul_i32 s43, s34, 3072")
    e("v_add_u32 v32, s43, v29")
    for j in range(3):
        for src in range(4):
            e(f"ds_read_b128 v[{AF+16*(j&0)+4*src}:{AF+4*src+3}], v32 offset:{src*12288 + j*1024}")
        e("s_waitcnt lgkmcnt(0)")
        for i in range(4):
            e(f"v_add_f32 v{AF+i}, v{AF+i}, v{AF+4+i}")
            e(f"v_add_f32 v{AF+8+i}, v{AF+8+i}, v{AF+12+i}")
            e(f"v_add_f32 v{AF+i}, v{AF+i}, v{AF+8+i}")
        e(f"v_cvt_pk_bf16_f32 v{BFR+2*j}, v{AF}, v{AF+1}")
        e(f"v_cvt_pk_bf16_f32 v{BFR+2*j+1}, v{AF+2}, v{AF+3}")
    g.c("store: tile t = 3w + j -> nt = t/3 = w, mt = j ; addr = (16mt + m16)*1792 + (16nt + 4g)*2")
    e("v_mul_u32_u24 v33, 1792, v2")
    e("v_lshl_add_u32 v33, v3, 3, v33")
    e("s_lshl_b32 s43, s34, 5")
    e("v_add_u32 v33, s43, v33")
    for j in range(3):
        if j:
            e(f"v_add_u32 v33, {16*1792}, v33")
        e(f"buffer_store_dwordx2 v[{BFR+2*j}:{BFR+2*j+1}], v33, s[12:15], 0 offen")
    e("s_waitcnt vmcnt(0)")
    g.l("L_op_end")
    e("s_endpgm")

def kernel_desc(name, vgpr, accum, sgpr=102):
    return f""".section .rodata,"a"
.p2align 6
.amdhsa_kernel {name}
  .amdhsa_next_free_vgpr {vgpr}
  .amdhsa_next_free_sgpr {sgpr}
  .amdhsa_accum_offset {accum}
  .amdhsa_group_segment_fixed_size 0
  .amdhsa_kernarg_size 104
  .amdhsa_user_sgpr_count 2
  .amdhsa_user_sgpr_kernarg_segment_ptr 1
  .amdhsa_system_sgpr_workgroup_id_x 1
.end_amdhsa_kernel
"""

def main():
    out = sys.argv[1]
    g = G()
    gen_attn(g)
    hdr = f"""; fused GQA attention: kernel 1 = Q-projection + attention (one workgroup per (block, batch, head)),
; @launch kernel=attn_kernel grid=(256,1,1) block=(256,1,1) lds={LDS_BYTES}
; @launch kernel=oproj_kernel grid=(224,1,1) block=(256,1,1) lds=49152
.amdgcn_target "amdgcn-amd-amdhsa--gfx950"
.text
.globl attn_kernel
.p2align 8
.type attn_kernel,@function
"""
    g2 = G()
    gen_oproj(g2)
    k2hdr = """.text
.globl oproj_kernel
.p2align 8
.type oproj_kernel,@function
"""
    txt = hdr + "\n".join(g.lines) + "\n" + kernel_desc("attn_kernel", 512, 256) + k2hdr + "\n".join(g2.lines) + "\n" + kernel_desc("oproj_kernel", 168, 168)
    open(out, "w").write(txt)

main()
```

```python
import sys, math

class G:
    def __init__(self):
        self.lines = []
    def e(self, s):
        self.lines.append("    " + s)
    def l(self, s):
        self.lines.append(s + ":")
    def c(self, s):
        self.lines.append("    ; " + s)

DEBUG = sys.argv[2] if len(sys.argv) > 2 else "full"

CSCALE = math.log2(math.e) / 16.0
def f32hex(x):
    import struct
    return "0x%08x" % struct.unpack("<I", struct.pack("<f", x))[0]

KRING = 0
VRING = 65536
QBUF = 98304
XBUF = 0
WRING = 86016
LDS_BYTES = 163840

STAMPS = len(sys.argv) > 3 and sys.argv[3] == "stamp"
stamp_n = [0]
def stamp(g):
    if not STAMPS: return
    n = stamp_n[0]; stamp_n[0] += 1
    g.e("s_waitcnt lgkmcnt(0)")
    g.e(f"s_memtime s[{60+2*(n%18)}:{61+2*(n%18)}]")
    g.e("s_waitcnt lgkmcnt(0)")

def gen_attn(g):
    e = g.e
    g.l("attn_kernel")
    e("s_cmp_ge_u32 s2, 256")
    e("s_cbranch_scc1 L_attn_end")
    g.c("decode workgroup id -> (blk, b, j, h)")
    e("s_lshr_b32 s24, s2, 3")
    e("s_and_b32 s25, s24, 1")
    e("s_lshr_b32 s26, s2, 4")
    e("s_lshl_b32 s26, s26, 3")
    e("s_and_b32 s27, s2, 7")
    e("s_or_b32 s26, s26, s27")
    e("s_lshr_b32 s27, s26, 6")
    e("s_bfe_u32 s28, s26, 0x30003")
    e("s_and_b32 s29, s26, 7")
    e("s_lshl_b32 s30, s29, 1")
    e("s_or_b32 s30, s30, s25")
    e("s_mul_i32 s31, s27, 40")
    e("s_add_u32 s32, s0, s31")
    e("s_addc_u32 s33, s1, 0")
    e("s_load_dwordx2 s[4:5], s[32:33], 0")
    e("s_load_dwordx2 s[12:13], s[32:33], 8")
    e("s_load_dwordx2 s[16:17], s[32:33], 16")
    e("s_load_dwordx2 s[8:9], s[32:33], 24")
    e("s_load_dwordx2 s[20:21], s[0:1], 96")
    e("v_lshrrev_b32 v1, 6, v0")
    e("s_nop 0")
    e("v_readfirstlane_b32 s34, v1")
    e("s_waitcnt lgkmcnt(0)")
    g.c("SRDs")
    e("s_mul_i32 s35, s28, 86016")
    e("s_add_u32 s4, s4, s35")
    e("s_addc_u32 s5, s5, 0")
    e("s_and_b32 s5, s5, 0xffff")
    e("s_mov_b32 s6, 86016")
    e("s_mov_b32 s7, 0x00020000")
    e("s_lshl_b32 s35, s30, 9")
    e("s_add_u32 s8, s8, s35")
    e("s_addc_u32 s9, s9, 0")
    e("s_and_b32 s9, s9, 0xffff")
    e("s_sub_u32 s10, 3670016, s35")
    e("s_mov_b32 s11, 0x00020000")
    e("s_lshl_b32 s36, s28, 3")
    e("s_add_u32 s36, s36, s29")
    e("s_lshl_b32 s36, s36, 19")
    e("s_add_u32 s12, s12, s36")
    e("s_addc_u32 s13, s13, 0")
    e("s_and_b32 s13, s13, 0xffff")
    e("s_mov_b32 s14, 524288")
    e("s_mov_b32 s15, 0x00020000")
    e("s_add_u32 s16, s16, s36")
    e("s_addc_u32 s17, s17, 0")
    e("s_and_b32 s17, s17, 0xffff")
    e("s_mov_b32 s18, 524288")
    e("s_mov_b32 s19, 0x00020000")
    e("s_mul_i32 s36, s27, 6291456")
    e("s_mul_i32 s37, s28, 786432")
    e("s_add_u32 s36, s36, s37")
    e("s_lshl_b32 s37, s30, 13")
    e("s_add_u32 s36, s36, s37")
    e("s_add_u32 s20, s20, s36")
    e("s_addc_u32 s21, s21, 0")
    e("s_and_b32 s21, s21, 0xffff")
    e("s_mov_b32 s22, 786432")
    e("s_mov_b32 s23, 0x00020000")
    e("s_lshr_b32 s38, s34, 1")
    e("s_and_b32 s39, s34, 1")
    g.c("lane decomposition")
    e("v_and_b32 v1, 63, v0")
    e("v_and_b32 v2, 15, v1")
    e("v_lshrrev_b32 v3, 4, v1")
    e("v_lshrrev_b32 v30, 5, v1")
    e("v_and_b32 v31, 31, v1")
    g.c("DMA voffsets for K/V tiles: v4..v7")
    for ii in range(4):
        e(f"v_add_u32 v32, {2*ii}, v30")
        e("v_and_b32 v32, 7, v32")
        e("v_lshlrev_b32 v32, 1, v32")
        e("v_xor_b32 v32, v31, v32")
        e("v_lshlrev_b32 v32, 4, v32")
        e(f"v_lshl_add_u32 v{4+ii}, v30, 9, v32")
    g.c("DMA voffsets for wq chunks: v8..v11 ; row = 2*(4w+ii)+hi ; f = (row&3)|((row>>1)&4)")
    e("s_lshl_b32 s40, s34, 3")
    for ii in range(4):
        e(f"v_add_u32 v32, {2*ii}, v30")
        e("v_add_u32 v32, s40, v32")
        e("v_and_b32 v33, 3, v32")
        e("v_lshrrev_b32 v34, 1, v32")
        e("v_and_b32 v34, 4, v34")
        e("v_or_b32 v33, v33, v34")
        e("v_lshlrev_b32 v33, 1, v33")
        e("v_xor_b32 v33, v31, v33")
        e("v_lshlrev_b32 v33, 4, v33")
        e(f"v_lshl_add_u32 v{8+ii}, v30, 13, v33")
    g.c("DMA voffset for x: q*896 + 16*g")
    e("v_mul_u32_u24 v12, 896, v2")
    e("v_lshl_add_u32 v12, v3, 4, v12")
    g.c("K A-frag addresses v13..v16")
    e("s_lshl_b32 s40, s39, 5")
    e("v_add_u32 v32, s40, v2")
    e("v_lshlrev_b32 v32, 9, v32")
    e("v_and_b32 v33, 7, v2")
    e("v_lshlrev_b32 v33, 1, v33")
    for s in range(4):
        e(f"v_add_u32 v34, {4*s}, v3")
        e("v_xor_b32 v34, v34, v33")
        e(f"v_lshl_add_u32 v{13+s}, v34, 4, v32")
    g.c("V tr-read addresses v17..v24 ; row = 32kh + 4g + (i>>2)")
    e("v_lshrrev_b32 v33, 2, v2")
    e("v_lshl_add_u32 v33, v3, 2, v33")
    e("v_and_b32 v34, 7, v33")
    e("v_add_u32 v33, s40, v33")
    e("v_lshlrev_b32 v33, 9, v33")
    e(f"v_add_u32 v33, {VRING}, v33")
    e("v_and_b32 v35, 3, v2")
    e("v_lshlrev_b32 v35, 3, v35")
    e("v_add_u32 v33, v33, v35")
    for dt in range(8):
        e(f"v_xor_b32 v36, {dt}, v34")
        e(f"v_lshl_add_u32 v{17+dt}, v36, 5, v33")
    g.c("wq tr-read addresses v25..v28 ; row = 8g + (i>>2) ; f = (i>>2) | ((g&1)<<2)")
    e("v_lshrrev_b32 v33, 2, v2")
    e("v_and_b32 v34, 1, v3")
    e("v_lshl_or_b32 v34, v34, 2, v33")
    e("v_lshl_add_u32 v33, v3, 3, v33")
    e("v_lshlrev_b32 v33, 9, v33")
    e(f"v_add_u32 v33, {WRING}, v33")
    e("v_add_u32 v33, v33, v35")
    e("s_lshl_b32 s40, s34, 2")
    for k in range(4):
        e(f"s_add_u32 s41, s40, {k}")
        e("s_and_b32 s42, s41, 7")
        e("v_xor_b32 v36, s42, v34")
        e(f"v_lshl_add_u32 v{25+k}, v36, 5, v33")
        e("s_lshr_b32 s42, s41, 3")
        e("s_lshl_b32 s42, s42, 8")
        e(f"v_add_u32 v{25+k}, s42, v{25+k}")
    e("v_lshlrev_b32 v29, 4, v1")
    e("v_add_u32 v37, 0x10000, v29")

    stamp(g)
    g.c("==== Q projection ====")
    g.c("stage x into LDS: 84 blocks of 1KB; wave w takes blocks w, w+4, ...")
    for n in range(21):
        e(f"s_add_u32 s40, s34, {4*n}")
        e("s_mul_i32 s41, s40, 171")
        e("s_lshr_b32 s41, s41, 10")
        e("s_mul_i32 s42, s41, 6")
        e("s_sub_u32 s42, s40, s42")
        e("s_mul_i32 s42, s42, 14336")
        e("s_lshl_b32 s41, s41, 6")
        e("s_add_u32 s42, s42, s41")
        e("s_lshl_b32 s43, s40, 10")
        e("s_mov_b32 m0, s43")
        e("s_nop 0")
        e("buffer_load_dwordx4 v12, s[4:7], s42 offen lds")
    def wq_dma(cs):
        slot = cs % 4
        e(f"s_lshl_b32 s40, s34, 12")
        e(f"s_add_u32 s40, s40, {WRING + slot*16384}")
        e("s_mov_b32 m0, s40")
        e(f"s_lshl_b32 s41, s34, 16")
        e(f"s_add_u32 s41, s41, {cs*32*8192}")
        for ii in range(4):
            if ii:
                e(f"s_add_u32 s40, s40, 1024")
                e("s_mov_b32 m0, s40")
                e(f"s_add_u32 s41, s41, 16384")
            e("s_nop 0")
            e(f"buffer_load_dwordx4 v{8+ii}, s[8:11], s41 offen lds")
    for c0 in range(3):
        wq_dma(c0)
    QACC = 64
    for t in range(96):
        e(f"v_mov_b32 v{QACC+t}, 0")
    AFS, BFS = [160, 200], [176, 216]
    def qreads(cs):
        slot = cs % 4
        AF, BF = AFS[cs & 1], BFS[cs & 1]
        for k in range(4):
            e(f"ds_read_b64_tr_b16 v[{AF+4*k}:{AF+4*k+1}], v{25+k} offset:{slot*16384}")
            e(f"ds_read_b64_tr_b16 v[{AF+4*k+2}:{AF+4*k+3}], v{25+k} offset:{slot*16384+2048}")
        for qt in range(6):
            off = XBUF + (cs*6+qt)*1024
            if off >= 65536:
                e(f"ds_read_b128 v[{BF+4*qt}:{BF+4*qt+3}], v37 offset:{off-65536}")
            else:
                e(f"ds_read_b128 v[{BF+4*qt}:{BF+4*qt+3}], v29 offset:{off}")
    e("s_waitcnt vmcnt(8)")
    e("s_barrier")
    qreads(0)
    for cs in range(14):
        if cs + 1 < 14:
            n_after = 4 * (min(cs + 2, 13) - (cs + 1))
            e(f"s_waitcnt vmcnt({n_after}) lgkmcnt(0)")
            e("s_barrier")
            if cs + 3 < 14:
                wq_dma(cs + 3)
            qreads(cs + 1)
        else:
            e("s_waitcnt lgkmcnt(0)")
        AF, BF = AFS[cs & 1], BFS[cs & 1]
        for k in range(4):
            for qt in range(6):
                a = QACC + (k*6+qt)*4
                e(f"v_mfma_f32_16x16x32_bf16 v[{a}:{a+3}], v[{AF+4*k}:{AF+4*k+3}], v[{BF+4*qt}:{BF+4*qt+3}], v[{a}:{a+3}]")
    AF = 160
    e("s_nop 7")
    e("s_nop 7")
    stamp(g)
    e("s_barrier")
    g.c("prefetch K(0), V(0), K(1)")
    def kv_dma(which, t, slot, out=None):
        em = (lambda x: out.append(x)) if out is not None else e
        srd = "s[12:15]" if which == 'K' else "s[16:19]"
        base = (KRING if which == 'K' else VRING) + slot*32768
        em(f"s_lshl_b32 s40, s34, 13")
        em(f"s_add_u32 s41, s40, {t*32768 if isinstance(t, int) else t}")
        em(f"s_add_u32 s40, s40, {base}")
        for half in range(2):
            if half:
                em("s_add_u32 s40, s40, 4096")
                em("s_add_u32 s41, s41, 4096")
            em("s_mov_b32 m0, s40")
            em("s_nop 0")
            for ii in range(4):
                em(f"buffer_load_dwordx4 v{4+ii}, {srd}, s41 offen offset:{ii*1024} lds")
    kv_dma('K', 0, 0)
    kv_dma('V', 0, 0)
    kv_dma('K', 1, 1)
    g.c("write Q^T tiles (bf16) to LDS Q buffer: q*528 + d*2")
    e("v_mul_u32_u24 v32, 528, v2")
    e("v_lshl_add_u32 v32, v3, 3, v32")
    e("s_lshl_b32 s40, s34, 7")
    e(f"s_add_u32 s40, s40, {QBUF}")
    e("v_add_u32 v32, s40, v32")
    for k in range(4):
        for qt in range(6):
            a = QACC + (k*6+qt)*4
            e(f"v_cvt_pk_bf16_f32 v{AF+4*qt}, v{a}, v{a+1}")
            e(f"v_cvt_pk_bf16_f32 v{AF+4*qt+1}, v{a+2}, v{a+3}")
            e(f"ds_write_b64 v32, v[{AF+4*qt}:{AF+4*qt+1}] offset:{qt*16*528 + k*32}")
    e("s_waitcnt lgkmcnt(0)")
    e("s_barrier")
    g.c("read Q B-frags: q = 48r + 16qt + q16 ; 16B at q*528 + (32s+8g)*2")
    QF = 64
    e("s_mul_i32 s40, s38, 48")
    e("v_add_u32 v32, s40, v2")
    e("v_mul_u32_u24 v32, 528, v32")
    e("v_lshl_add_u32 v32, v3, 4, v32")
    e(f"v_add_u32 v32, {QBUF}, v32")
    for s in range(8):
        for qt in range(3):
            f = QF + (s*3+qt)*4
            e(f"ds_read_b128 v[{f}:{f+3}], v32 offset:{qt*16*528 + s*64}")
    e("s_waitcnt lgkmcnt(0)")
    e("s_barrier")

    g.c("==== attention main loop ====")
    SACC = [160, 184]
    PF = 208
    KF = 220
    MREF, THR, MC, LSUM, MX = 236, 239, 242, 245, 248
    T0 = 252
    TT = 38
    for qt in range(3):
        e(f"v_mov_b32 v{MREF+qt}, 0xff800000")
        e(f"v_mov_b32 v{THR+qt}, 0xff800000")
        e(f"v_mov_b32 v{MC+qt}, 0")
        e(f"v_mov_b32 v{LSUM+qt}, 0")
    for t in range(192):
        e(f"v_accvgpr_write_b32 a{t}, 0")
    e(f"s_mov_b32 s46, {f32hex(CSCALE)}")

    def merge(main, side):
        nm = sum(1 for x in main if x.startswith("v_mfma"))
        out = []
        k = 0
        done = 0
        for x in main:
            out.append(x)
            if x.startswith("v_mfma"):
                k += 1
                tgt = (len(side) * k) // nm
                while done < tgt:
                    out.append(side[done]); done += 1
        out.extend(side[done:])
        return out

    def qk_stream(slot, S):
        o = []
        def kread(s, kt, dst):
            o.append(f"ds_read_b128 v[{dst}:{dst+3}], v{13+(s&3)} offset:{KRING + slot*32768 + kt*8192 + (s>>2)*256}")
        for kt in range(2):
            kread(0, kt, KF + kt*4)
        for s in range(8):
            cur = KF + (s & 1)*8
            nxt = KF + ((s+1) & 1)*8
            if s < 7:
                for kt in range(2):
                    kread(s+1, kt, nxt + kt*4)
                o.append("s_waitcnt lgkmcnt(2)")
            else:
                o.append("s_waitcnt lgkmcnt(0)")
            for kt in range(2):
                for qt in range(3):
                    a = S + (kt*3+qt)*4
                    q = QF + (s*3+qt)*4
                    src = "0" if s == 0 else f"v[{a}:{a+3}]"
                    o.append(f"v_mfma_f32_16x16x32_bf16 v[{a}:{a+3}], v[{cur+kt*4}:{cur+kt*4+3}], v[{q}:{q+3}], {src}")
        return o

    def max_part(S):
        o = []
        for qt in range(3):
            a0 = S + qt*4
            a1 = S + (3+qt)*4
            o.append(f"v_max3_f32 v{MX+qt}, v{a0}, v{a0+1}, v{a0+2}")
            o.append(f"v_max3_f32 v{MX+qt}, v{MX+qt}, v{a0+3}, v{a1}")
            o.append(f"v_max3_f32 v{MX+qt}, v{MX+qt}, v{a1+1}, v{a1+2}")
            o.append(f"v_max_f32 v{MX+qt}, v{MX+qt}, v{a1+3}")
        for qt in range(3):
            o.append(f"v_mov_b32 v{TT+qt}, v{MX+qt}")
        o.append("s_nop 1")
        for qt in range(3):
            o.append(f"v_permlane16_swap_b32 v{MX+qt}, v{TT+qt}")
        for qt in range(3):
            o.append(f"v_max_f32 v{MX+qt}, v{MX+qt}, v{TT+qt}")
        for qt in range(3):
            o.append(f"v_mov_b32 v{TT+qt}, v{MX+qt}")
        o.append("s_nop 1")
        for qt in range(3):
            o.append(f"v_permlane32_swap_b32 v{MX+qt}, v{TT+qt}")
        for qt in range(3):
            o.append(f"v_max_f32 v{MX+qt}, v{MX+qt}, v{TT+qt}")
        o.append(f"v_cmp_gt_f32 s[48:49], v{MX}, v{THR}")
        o.append(f"v_cmp_gt_f32 s[50:51], v{MX+1}, v{THR+1}")
        o.append(f"v_cmp_gt_f32 s[52:53], v{MX+2}, v{THR+2}")
        return o

    lab = [0]
    def rescale_check():
        n = lab[0]; lab[0] += 1
        e("s_nop 3")
        e("s_or_b64 s[48:49], s[48:49], s[50:51]")
        e("s_or_b64 s[48:49], s[48:49], s[52:53]")
        e(f"s_cbranch_scc0 L_norescale{n}")
        g.c("rescale path (rare)")
        for qt in range(3):
            e(f"v_max_f32 v{T0}, v{MREF+qt}, v{MX+qt}")
            e(f"v_sub_f32 v{T0+1}, v{MREF+qt}, v{T0}")
            e(f"v_mul_f32 v{T0+1}, s46, v{T0+1}")
            e(f"v_exp_f32 v{T0+1}, v{T0+1}")
            e(f"v_mov_b32 v{MREF+qt}, v{T0}")
            e(f"v_add_f32 v{THR+qt}, {f32hex(8.0/CSCALE)}, v{T0}")
            e(f"v_mul_f32 v{MC+qt}, s46, v{T0}")
            e(f"v_mul_f32 v{LSUM+qt}, v{LSUM+qt}, v{T0+1}")
            for dt in range(16):
                for i in range(4):
                    a = (dt*3+qt)*4 + i
                    e(f"v_accvgpr_read_b32 v{T0+2}, a{a}")
                    e(f"v_mul_f32 v{T0+2}, v{T0+2}, v{T0+1}")
                    e(f"v_accvgpr_write_b32 a{a}, v{T0+2}")
        g.l(f"L_norescale{n}")

    def exp_part(S):
        o = []
        for qt in range(3):
            a0 = S + qt*4
            a1 = S + (3+qt)*4
            for a in (a0, a1):
                for i in range(4):
                    o.append(f"v_fma_f32 v{a+i}, v{a+i}, s46, -v{MC+qt}")
                    o.append(f"v_exp_f32 v{a+i}, v{a+i}")
            t = TT + 4*qt
            o.append(f"v_add_f32 v{t}, v{a0}, v{a0+1}")
            o.append(f"v_add_f32 v{t+1}, v{a0+2}, v{a0+3}")
            o.append(f"v_add_f32 v{t+2}, v{a1}, v{a1+1}")
            o.append(f"v_add_f32 v{t+3}, v{a1+2}, v{a1+3}")
            o.append(f"v_add_f32 v{t}, v{t}, v{t+1}")
            o.append(f"v_add_f32 v{t+2}, v{t+2}, v{t+3}")
            o.append(f"v_add_f32 v{LSUM+qt}, v{LSUM+qt}, v{t}")
            o.append(f"v_add_f32 v{LSUM+qt}, v{LSUM+qt}, v{t+2}")
            p = PF + qt*4
            o.append(f"v_cvt_pk_bf16_f32 v{p}, v{a0}, v{a0+1}")
            o.append(f"v_cvt_pk_bf16_f32 v{p+1}, v{a0+2}, v{a0+3}")
            o.append(f"v_cvt_pk_bf16_f32 v{p+2}, v{a1}, v{a1+1}")
            o.append(f"v_cvt_pk_bf16_f32 v{p+3}, v{a1+2}, v{a1+3}")
        return o

    def pv_stream(slot):
        o = []
        def vread(dt, dst):
            off = slot*32768 + (dt >> 3)*256
            o.append(f"ds_read_b64_tr_b16 v[{dst}:{dst+1}], v{17+(dt&7)} offset:{off}")
            o.append(f"ds_read_b64_tr_b16 v[{dst+2}:{dst+3}], v{17+(dt&7)} offset:{off+8192}")
        vread(0, KF)
        vread(1, KF+4)
        for dt in range(16):
            cur = KF + (dt & 3)*4
            if dt + 2 < 16:
                vread(dt+2, KF + ((dt+2) & 3)*4)
                o.append("s_waitcnt lgkmcnt(4)")
            elif dt + 1 < 16:
                o.append("s_waitcnt lgkmcnt(2)")
            else:
                o.append("s_waitcnt lgkmcnt(0)")
            for qt in range(3):
                a = (dt*3+qt)*4
                p = PF + qt*4
                o.append(f"v_mfma_f32_16x16x32_bf16 a[{a}:{a+3}], v[{cur}:{cur+3}], v[{p}:{p+3}], a[{a}:{a+3}]")
        return o

    stamp(g)
    e("s_waitcnt vmcnt(16)")
    e("s_barrier")
    stamp(g)
    g.c("prologue: QK(0), max(0), rescale")
    for x in qk_stream(0, SACC[0]): e(x)
    e("s_nop 7")
    for x in max_part(SACC[0]): e(x)
    rescale_check()
    e("s_waitcnt vmcnt(0)")
    e("s_barrier")
    kv_dma('K', 2, 0)
    kv_dma('V', 1, 1)
    e("s_mov_b32 s44, 0")
    e(f"s_mov_b32 s45, {2*32768}")
    def body(slot, full):
        Scur, Snxt = SACC[slot], SACC[1-slot]
        g.c(f"---- X slot {slot}")
        side = exp_part(Scur)
        if full:
            for x in merge(qk_stream(1-slot, Snxt), side): e(x)
        else:
            for x in side: e(x)
        if slot == 0: stamp(g)
        e("s_waitcnt vmcnt(16)" if full else "s_waitcnt vmcnt(0)")
        e("s_barrier")
        if slot == 0: stamp(g)
        g.c(f"---- Y slot {slot}")
        side = []
        if full:
            kv_dma('K', "s47", 1-slot, side)
            side.append("s_nop 4")
            side += max_part(Snxt)
        else:
            e("s_nop 1")
        for x in merge(pv_stream(slot), side): e(x)
        if full:
            rescale_check()
            if slot == 0: stamp(g)
            e("s_waitcnt vmcnt(16)")
            e("s_barrier")
            if slot == 0: stamp(g)
            kv_dma('V', "s45", slot)
            e("s_add_u32 s45, s45, 32768")
            e("s_add_u32 s47, s45, 32768")
    e(f"s_mov_b32 s47, {3*32768}")
    g.l("L_loop")
    body(0, True)
    body(1, True)
    e("s_add_u32 s44, s44, 1")
    e("s_cmp_lt_u32 s44, 7")
    e("s_cbranch_scc1 L_loop")
    body(0, True)
    body(1, False)

    TE = 38
    stamp(g)
    g.c("==== epilogue ====")
    e("s_waitcnt vmcnt(0)")
    e("s_barrier")
    e("s_lshl_b32 s40, s38, 16")
    e("v_add_u32 v32, s40, v29")
    e("s_cmp_eq_u32 s39, 0")
    e("s_cbranch_scc1 L_ep_recv")
    for t in range(48):
        e(f"ds_write_b128 v32, a[{4*t}:{4*t+3}] offset:{t*1024}")
    for qt in range(3):
        e(f"v_mov_b32 v{TE}, v{MREF+qt}")
        e(f"v_mov_b32 v{TE+1}, v{LSUM+qt}")
        e(f"ds_write_b64 v32, v[{TE}:{TE+1}] offset:{49152 + qt*1024}")
    e("s_waitcnt lgkmcnt(0)")
    e("s_barrier")
    e("s_branch L_attn_end")
    g.l("L_ep_recv")
    e("s_barrier")
    F0, F1, INV = 226, 229, 223
    for qt in range(3):
        e(f"ds_read_b64 v[{TE}:{TE+1}], v32 offset:{49152 + qt*1024}")
        e("s_waitcnt lgkmcnt(0)")
        e(f"v_max_f32 v{TE+2}, v{MREF+qt}, v{TE}")
        e(f"v_sub_f32 v{TE+3}, v{MREF+qt}, v{TE+2}")
        e(f"v_mul_f32 v{TE+3}, s46, v{TE+3}")
        e(f"v_exp_f32 v{F0+qt}, v{TE+3}")
        e(f"v_sub_f32 v{TE+3}, v{TE}, v{TE+2}")
        e(f"v_mul_f32 v{TE+3}, s46, v{TE+3}")
        e(f"v_exp_f32 v{F1+qt}, v{TE+3}")
        e("s_nop 0")
        e(f"v_mul_f32 v{TE+4}, v{LSUM+qt}, v{F0+qt}")
        e(f"v_fma_f32 v{TE+4}, v{TE+1}, v{F1+qt}, v{TE+4}")
        e(f"v_mov_b32 v{TE+5}, v{TE+4}")
        e("s_nop 1")
        e(f"v_permlane16_swap_b32 v{TE+4}, v{TE+5}")
        e(f"v_add_f32 v{TE+4}, v{TE+4}, v{TE+5}")
        e(f"v_mov_b32 v{TE+5}, v{TE+4}")
        e("s_nop 1")
        e(f"v_permlane32_swap_b32 v{TE+4}, v{TE+5}")
        e(f"v_add_f32 v{TE+4}, v{TE+4}, v{TE+5}")
        e(f"v_rcp_f32 v{INV+qt}, v{TE+4}")
        e("s_nop 0")
        e(f"v_mul_f32 v{F0+qt}, v{F0+qt}, v{INV+qt}")
        e(f"v_mul_f32 v{F1+qt}, v{F1+qt}, v{INV+qt}")
    g.c("O' layout: [mtile][kstep][1KB]: mtile = 6b+3r+qt ; kstep = 8h+u ; SRD base already has blk + b*786432 + h*8192")
    e("s_mul_i32 s40, s38, 393216")
    e("v_add_u32 v33, s40, v29")
    for u in range(8):
        for qt in range(3):
            for half in range(2):
                t = (2*u+half)*3+qt
                e(f"ds_read_b128 v[{40+4*half}:{43+4*half}], v32 offset:{t*1024}")
                for i in range(4):
                    e(f"v_accvgpr_read_b32 v{50+4*half+i}, a{4*t+i}")
            e("s_waitcnt lgkmcnt(0)")
            for half in range(2):
                for i in range(4):
                    e(f"v_mul_f32 v{50+4*half+i}, v{50+4*half+i}, v{F0+qt}")
                    e(f"v_fma_f32 v{50+4*half+i}, v{40+4*half+i}, v{F1+qt}, v{50+4*half+i}")
                e(f"v_cvt_pk_bf16_f32 v{58+2*half}, v{50+4*half}, v{51+4*half}")
                e(f"v_cvt_pk_bf16_f32 v{59+2*half}, v{52+4*half}, v{53+4*half}")
            e(f"v_add_u32 v34, {qt*131072 + u*1024}, v33")
            e(f"buffer_store_dwordx4 v[58:61], v34, s[20:23], 0 offen")
    e("s_waitcnt vmcnt(0)")
    stamp(g)
    if STAMPS:
        e("s_cmp_lg_u32 s2, 0")
        e("s_cbranch_scc1 L_attn_end")
        e("s_cmp_lg_u32 s34, 0")
        e("s_cbranch_scc1 L_attn_end")
        e("s_load_dwordx2 s[56:57], s[0:1], 88")
        e("s_waitcnt lgkmcnt(0)")
        e("s_mov_b32 s58, 256")
        e("s_mov_b32 s59, 0x00020000")
        e("v_mov_b32 v2, 0")
        for n in range(16):
            e(f"v_mov_b32 v1, s{60+2*n}")
            e(f"buffer_store_dword v1, v2, s[56:59], 0 offen offset:{4*n}")
        e("s_waitcnt vmcnt(0)")
    g.l("L_attn_end")
    e("s_endpgm")


def gen_oproj(g):
    e = g.e
    g.l("oproj_kernel")
    e("s_cmp_ge_u32 s2, 224")
    e("s_cbranch_scc1 L_op_end")
    e("s_and_b32 s24, s2, 7")
    e("s_lshr_b32 s25, s2, 3")
    e("s_mul_i32 s26, s25, 9363")
    e("s_lshr_b32 s26, s26, 16")
    e("s_mul_i32 s27, s26, 7")
    e("s_sub_u32 s27, s25, s27")
    e("s_lshl_b32 s24, s24, 2")
    e("s_add_u32 s24, s24, s26")
    e("s_and_b32 s26, s24, 15")
    e("s_lshr_b32 s24, s24, 4")
    e("s_mul_i32 s31, s24, 40")
    e("s_add_u32 s32, s0, s31")
    e("s_addc_u32 s33, s1, 0")
    e("s_load_dwordx2 s[4:5], s[32:33], 32")
    e("s_load_dwordx2 s[8:9], s[0:1], 96")
    e("s_load_dwordx2 s[12:13], s[0:1], 80")
    e("v_lshrrev_b32 v1, 6, v0")
    e("s_nop 0")
    e("v_readfirstlane_b32 s34, v1")
    e("s_waitcnt lgkmcnt(0)")
    e("s_lshl_b32 s35, s27, 7")
    e("s_add_u32 s4, s4, s35")
    e("s_addc_u32 s5, s5, 0")
    e("s_and_b32 s5, s5, 0xffff")
    e("s_sub_u32 s6, 3670016, s35")
    e("s_mov_b32 s7, 0x00020000")
    e("s_mul_i32 s36, s24, 6291456")
    e("s_mul_i32 s37, s26, 393216")
    e("s_add_u32 s36, s36, s37")
    e("s_add_u32 s8, s8, s36")
    e("s_addc_u32 s9, s9, 0")
    e("s_and_b32 s9, s9, 0xffff")
    e("s_mov_b32 s10, 393216")
    e("s_mov_b32 s11, 0x00020000")
    e("s_mul_i32 s36, s26, 86016")
    e("s_mul_i32 s37, s24, 896")
    e("s_add_u32 s36, s36, s37")
    e("s_add_u32 s36, s36, s35")
    e("s_add_u32 s12, s12, s36")
    e("s_addc_u32 s13, s13, 0")
    e("s_and_b32 s13, s13, 0xffff")
    e("s_sub_u32 s14, 1376256, s36")
    e("s_mov_b32 s15, 0x00020000")
    e("v_and_b32 v1, 63, v0")
    e("v_and_b32 v2, 15, v1")
    e("v_lshrrev_b32 v3, 4, v1")
    g.c("DMA voffset: row = L>>3 (within 8-row group), unit32 swizzle")
    e("v_lshrrev_b32 v30, 3, v1")
    e("v_and_b32 v31, 7, v1")
    for ii in range(4):
        e("v_lshrrev_b32 v32, 1, v30")
        e("v_and_b32 v32, 3, v32")
        e("v_lshlrev_b32 v32, 1, v32")
        e("v_xor_b32 v32, v31, v32")
        e("v_lshlrev_b32 v32, 4, v32")
        e("v_mul_u32_u24 v33, 896, v30")
        e(f"v_add_u32 v{4+ii}, v32, v33")
    g.c("tr-read addresses: row = 8g + (i>>2) ; f(row) ; 4 n-tiles -> v8..v11")
    e("v_lshrrev_b32 v33, 2, v2")
    e("v_lshl_add_u32 v34, v3, 2, v33")
    e("v_lshrrev_b32 v35, 1, v34")
    e("v_and_b32 v35, 3, v35")
    e("v_lshlrev_b32 v34, 7, v34")
    e("s_lshl_b32 s40, s34, 15")
    e("v_add_u32 v34, s40, v34")
    e("v_and_b32 v36, 3, v2")
    e("v_lshl_add_u32 v34, v36, 3, v34")
    for nt in range(4):
        e(f"v_xor_b32 v36, {nt}, v35")
        e(f"v_lshl_add_u32 v{8+nt}, v36, 5, v34")
    g.c("B-frag global offsets: (16mt3 + m16)*8192 + w*2048 + 16g")
    e("v_lshlrev_b32 v12, 4, v1")
    e("s_lshl_b32 s41, s34, 15")
    e("v_add_u32 v12, s41, v12")
    g.c("DMA soffset base: (w*1024 rows)*896")
    e("s_mul_i32 s42, s34, 917504")
    ACC = 64
    for t in range(48):
        e(f"v_mov_b32 v{ACC+t}, 0")
    AF = 112
    BFR = 144
    def dma(ks):
        slot = ks % 8
        e(f"s_add_u32 s43, s40, {slot*4096}")
        e(f"s_add_u32 s44, s42, {ks*32*896}")
        for ii in range(4):
            if ii:
                e("s_add_u32 s43, s43, 1024")
                e("s_add_u32 s44, s44, 7168")
            e("s_mov_b32 m0, s43")
            e("s_nop 0")
            e(f"buffer_load_dwordx4 v{4+ii}, s[4:7], s44 offen lds")
    def bload(ks):
        st = BFR + (ks & 7)*12
        e(f"s_mov_b32 s45, {(ks*1024)//4096*4096}")
        for mt in range(3):
            e(f"buffer_load_dwordx4 v[{st+4*mt}:{st+4*mt+3}], v12, s[8:11], s45 offen offset:{(ks*1024)%4096}" if mt == 0 else
              f"buffer_load_dwordx4 v[{st+4*mt}:{st+4*mt+3}], v13, s[8:11], s45 offen offset:{(ks*1024)%4096}" if mt == 1 else
              f"buffer_load_dwordx4 v[{st+4*mt}:{st+4*mt+3}], v14, s[8:11], s45 offen offset:{(ks*1024)%4096}")
    e(f"v_add_u32 v13, {131072}, v12")
    e(f"v_add_u32 v14, {2*131072}, v12")
    for ks in range(8):
        dma(ks); bload(ks)
    for ks in range(32):
        rem = min(31 - ks, 7)
        e(f"s_waitcnt vmcnt({7*rem})")
        slot = ks % 8
        for nt in range(4):
            e(f"ds_read_b64_tr_b16 v[{AF+4*nt}:{AF+4*nt+1}], v{8+nt} offset:{slot*4096}")
            e(f"ds_read_b64_tr_b16 v[{AF+4*nt+2}:{AF+4*nt+3}], v{8+nt} offset:{slot*4096+2048}")
        e("s_waitcnt lgkmcnt(0)")
        st = BFR + (ks & 7)*12
        for nt in range(4):
            for mt in range(3):
                a = ACC + (nt*3+mt)*4
                e(f"v_mfma_f32_16x16x32_bf16 v[{a}:{a+3}], v[{AF+4*nt}:{AF+4*nt+3}], v[{st+4*mt}:{st+4*mt+3}], v[{a}:{a+3}]")
        if ks + 8 < 32:
            dma(ks+8)
            bload(ks+8)
    e("s_nop 7")
    e("s_nop 7")
    g.c("cross-wave reduction via LDS: region 49152.. each wave writes 12 tiles x 1KB")
    e("s_barrier")
    e("v_lshlrev_b32 v29, 4, v1")
    e("s_mul_i32 s43, s34, 12288")
    e("v_add_u32 v32, s43, v29")
    for t in range(12):
        e(f"ds_write_b128 v32, v[{ACC+4*t}:{ACC+4*t+3}] offset:{t*1024}")
    e("s_waitcnt lgkmcnt(0)")
    e("s_barrier")
    g.c("wave w reduces tiles 3w..3w+2")
    e("s_mul_i32 s43, s34, 3072")
    e("v_add_u32 v32, s43, v29")
    for j in range(3):
        for src in range(4):
            e(f"ds_read_b128 v[{AF+16*(j&0)+4*src}:{AF+4*src+3}], v32 offset:{src*12288 + j*1024}")
        e("s_waitcnt lgkmcnt(0)")
        for i in range(4):
            e(f"v_add_f32 v{AF+i}, v{AF+i}, v{AF+4+i}")
            e(f"v_add_f32 v{AF+8+i}, v{AF+8+i}, v{AF+12+i}")
            e(f"v_add_f32 v{AF+i}, v{AF+i}, v{AF+8+i}")
        e(f"v_cvt_pk_bf16_f32 v{BFR+2*j}, v{AF}, v{AF+1}")
        e(f"v_cvt_pk_bf16_f32 v{BFR+2*j+1}, v{AF+2}, v{AF+3}")
    g.c("store: tile t = 3w + j -> nt = t/3 = w, mt = j ; addr = (16mt + m16)*1792 + (16nt + 4g)*2")
    e("v_mul_u32_u24 v33, 1792, v2")
    e("v_lshl_add_u32 v33, v3, 3, v33")
    e("s_lshl_b32 s43, s34, 5")
    e("v_add_u32 v33, s43, v33")
    for j in range(3):
        if j:
            e(f"v_add_u32 v33, {16*1792}, v33")
        e(f"buffer_store_dwordx2 v[{BFR+2*j}:{BFR+2*j+1}], v33, s[12:15], 0 offen")
    e("s_waitcnt vmcnt(0)")
    g.l("L_op_end")
    e("s_endpgm")

def kernel_desc(name, vgpr, accum, sgpr=102):
    return f""".section .rodata,"a"
.p2align 6
.amdhsa_kernel {name}
  .amdhsa_next_free_vgpr {vgpr}
  .amdhsa_next_free_sgpr {sgpr}
  .amdhsa_accum_offset {accum}
  .amdhsa_group_segment_fixed_size 0
  .amdhsa_kernarg_size 104
  .amdhsa_user_sgpr_count 2
  .amdhsa_user_sgpr_kernarg_segment_ptr 1
  .amdhsa_system_sgpr_workgroup_id_x 1
.end_amdhsa_kernel
"""

def main():
    out = sys.argv[1]
    g = G()
    gen_attn(g)
    hdr = f"""; fused GQA attention: kernel 1 = Q-projection + attention (one workgroup per (block, batch, head)),
; @launch kernel=attn_kernel grid=(256,1,1) block=(256,1,1) lds={LDS_BYTES}
; @launch kernel=oproj_kernel grid=(224,1,1) block=(256,1,1) lds=131072
.amdgcn_target "amdgcn-amd-amdhsa--gfx950"
.text
.globl attn_kernel
.p2align 8
.type attn_kernel,@function
"""
    g2 = G()
    gen_oproj(g2)
    k2hdr = """.text
.globl oproj_kernel
.p2align 8
.type oproj_kernel,@function
"""
    txt = hdr + "\n".join(g.lines) + "\n" + kernel_desc("attn_kernel", 512, 256) + k2hdr + "\n".join(g2.lines) + "\n" + kernel_desc("oproj_kernel", 256, 256)
    open(out, "w").write(txt)

main()
```
